```python
import torch

def _softmax(x, axis=-1):
    return torch.softmax(x, dim=axis)

def _gelu(x):
    return torch.nn.functional.gelu(x, approximate='tanh')

def _silu(x):
    return torch.nn.functional.silu(x)

def _sigmoid(x):
    return torch.sigmoid(x)

def _layernorm(x, axis=-1, eps=1e-05):
    m = x.mean(dim=axis, keepdim=True)
    v = x.var(dim=axis, keepdim=True, unbiased=False)
    return (x - m) / torch.sqrt(v + eps)

def _scatter_add(tgt, idx, src, axis=0):
    return tgt.clone().index_add_(axis, idx, src)

def _segment_sum(src, seg, n):
    out = torch.zeros((n,) + src.shape[1:], dtype=src.dtype)
    return out.index_add_(0, seg, src)

def _pad(x, pw):
    flat = tuple((v for pair in reversed(pw) for v in pair))
    return torch.nn.functional.pad(x, flat)
kernel_name = 'standalone__tree_speculative_verify_tree_attention_over_candidate_token_tree__sampling'

def setup_inputs():

    _w = lambda a: (lambda t: t.to(torch.bfloat16) if t.is_floating_point() else t)(torch.as_tensor(a))
    B, Hq, Hkv, T, C, D = (32, 32, 4, 16, 2048, 128)
    tree_mask = torch.zeros((B, T, T), dtype=float)
    for b in range(B):
        parent = torch.zeros(T, dtype=torch.int64)
        for i in range(1, T):
            parent[i] = int(torch.randint(0, i, (1,)).item())
        for i in range(T):
            j = i
            tree_mask[b, i, j] = 1.0
            while j > 0:
                j = parent[j]
                tree_mask[b, i, j] = 1.0
    return {'q': _w((lambda *s: torch.randn(*s, dtype=torch.bfloat16) * 0.8)(B, Hq, T, D)), 'k_cache': _w((lambda *s: torch.randn(*s, dtype=torch.bfloat16) * 0.8)(B, Hkv, C, D)), 'v_cache': _w((lambda *s: torch.randn(*s, dtype=torch.bfloat16) * 0.05)(B, Hkv, C, D)), 'k_tree': _w((lambda *s: torch.randn(*s, dtype=torch.bfloat16) * 0.8)(B, Hkv, T, D)), 'v_tree': _w((lambda *s: torch.randn(*s, dtype=torch.bfloat16) * 0.05)(B, Hkv, T, D)), 'tree_mask': _w(tree_mask)}

def reference(q, k_cache, v_cache, k_tree, v_tree, tree_mask):
    B, Hq, T, D = q.shape
    Hkv, C = (k_cache.shape[1], k_cache.shape[2])
    rep = Hq // Hkv
    kc = (lambda x, n, axis: torch.repeat_interleave(x, n, dim=axis))(k_cache, rep, axis=1)
    vc = (lambda x, n, axis: torch.repeat_interleave(x, n, dim=axis))(v_cache, rep, axis=1)
    kt = (lambda x, n, axis: torch.repeat_interleave(x, n, dim=axis))(k_tree, rep, axis=1)
    vt = (lambda x, n, axis: torch.repeat_interleave(x, n, dim=axis))(v_tree, rep, axis=1)
    k = torch.concatenate([kc, kt], axis=2)
    v = torch.concatenate([vc, vt], axis=2)
    scale = D ** (-0.5)
    scores = torch.einsum('bhqd,bhkd->bhqk', q, k) * scale
    ctx_mask = torch.ones((B, 1, T, C), dtype=scores.dtype)
    tm = tree_mask[:, None, :, :].clone()
    full_mask = torch.concatenate([ctx_mask, tm], axis=-1)
    scores = scores + (1.0 - full_mask) * -1000000000.0
    p = _softmax(scores, axis=-1)
    return torch.einsum('bhqk,bhkd->bhqd', p, v)
```

```python
import re

TRANS = ("v_exp_f32", "v_log_f32", "v_rcp_f32", "v_rsq_f32", "v_sqrt_f32")

def regs(tok):
    tok = tok.strip().lstrip("-")
    if tok.startswith("abs(") or tok.startswith("|"):
        tok = tok.strip("|").replace("abs(", "").rstrip(")")
    m = re.fullmatch(r"([vsa])\[(\d+):(\d+)\]", tok)
    if m: return {f"{m.group(1)}{i}" for i in range(int(m.group(2)), int(m.group(3)) + 1)}
    m = re.fullmatch(r"([vsa])(\d+)", tok)
    if m: return {tok}
    if tok in ("vcc", "exec", "m0"): return {tok}
    return set()

class I:
    def __init__(s, text):
        s.text = text
        t = text.split(";")[0].strip()
        p = t.split(None, 1)
        s.op = p[0]
        ops = [x.strip() for x in p[1].split(",")] if len(p) > 1 else []
        if ops: ops[-1] = ops[-1].split()[0] if ops[-1] else ops[-1]
        s.ops = ops
        s.w = set(); s.r = set(); s.a = s.b = s.c = set()
        op = s.op
        s.mfma = op.startswith("v_mfma")
        s.valu = op.startswith("v_") and not s.mfma
        s.trans = op.replace("_e32", "").replace("_e64", "") in TRANS
        s.vmem = op.startswith("buffer_") or op.startswith("global_")
        s.ds = op.startswith("ds_")
        s.salu = op.startswith("s_")
        s.states = 1
        if op == "s_nop": s.states = int(ops[0], 0) + 1
        if s.mfma:
            s.w = regs(ops[0]); s.a = regs(ops[1]); s.b = regs(ops[2]); s.c = regs(ops[3]); s.r = s.a | s.b | s.c
            s.passes = 8 if "32x32" in op else 4
        elif op.startswith("v_permlane"):
            s.w = regs(ops[0]) | regs(ops[1]); s.r = set(s.w)
        elif s.valu:
            s.w = regs(ops[0])
            for o in ops[1:]: s.r |= regs(o)
            if op.startswith("v_fmac") or op.startswith("v_pk_fmac"): s.r |= s.w
        elif s.ds:
            if "read" in op: s.w = regs(ops[0]); s.r = regs(ops[1])
            else:
                for o in ops: s.r |= regs(o)
        elif s.vmem:
            if " lds" in t or "store" in op or "atomic" in op:
                for o in ops: s.r |= regs(o)
                if " lds" in t: s.r |= {"m0"}
                s.data = regs(ops[0]) if (op.startswith("buffer_store")) else set()
            else:
                s.w = regs(ops[0])
                for o in ops[1:]: s.r |= regs(o)
        elif s.salu and ops and not op.startswith(("s_cmp", "s_cbranch", "s_branch", "s_waitcnt", "s_nop", "s_setprio", "s_sleep")):
            s.w = regs(ops[0])
            for o in ops[1:]: s.r |= regs(o)
        if op in ("s_cbranch_vccz", "s_cbranch_vccnz"): s.r = {"vcc"}

def need(p, c):
    n = 0
    vreg = lambda x: {r for r in x if r[0] in "va" and r != "vcc"}
    sreg = lambda x: {r for r in x if r[0] == "s" or r == "vcc"}
    if p.valu:
        if c.mfma and vreg(p.w) & c.r: n = max(n, 2)
        if p.trans and c.valu and not c.trans and vreg(p.w) & c.r: n = max(n, 1)
        if c.op.startswith("v_permlane") and vreg(p.w) & c.r: n = max(n, 2)
        if c.op.startswith(("v_readfirstlane", "v_readlane")) and vreg(p.w) & c.r: n = max(n, 1)
        if "dpp" in c.text and vreg(p.w) & c.r: n = max(n, 2)
        if c.vmem and sreg(p.w) & c.r: n = max(n, 5)
        if c.valu and sreg(p.w) & c.r: n = max(n, 2)
    if p.mfma:
        t = {4: (6, 8), 8: (10, 12)}[p.passes]
        if c.mfma:
            if p.w & (c.a | c.b): n = max(n, t[1])
            if p.w & c.c and not (p.w == c.c and p.passes == c.passes): n = max(n, t[0])
            if p.w & c.w and not (p.w == c.c and p.passes == c.passes): n = max(n, t[0])
        elif (c.valu or c.vmem or c.ds) and p.w & (c.r | c.w): n = max(n, t[1])
        if c.valu and p.c & c.w: n = max(n, {4: 3, 8: 7}[p.passes])
    if p.salu and "m0" in p.w and c.vmem and "m0" in c.r: n = max(n, 1)
    if p.vmem and p.op.endswith(("x3", "x4")) and "store" in p.op and c.valu and p.data & c.w: n = max(n, 2)
    return n

def check(lines, name=""):
    ins = []
    for l in lines:
        t = l.split(";")[0].strip()
        if not t or t.endswith(":") or t.startswith("."): continue
        ins.append(I(l))
    bad = 0
    for j, c in enumerate(ins):
        dist = 0
        for i in range(j - 1, max(-1, j - 24), -1):
            p = ins[i]
            n = need(p, c)
            if n > dist:
                print(f"HAZARD[{name}] need {n} have {dist}: '{p.text.strip()}' -> '{c.text.strip()}'"); bad += 1
            dist += p.states
            if dist >= 20: break
    return bad
```

```python
import sys, math, struct
sys.path.insert(0, "gen"); sys.path.insert(0, "tools")
import hazard

NAME = "standalone__tree_speculative_verify_tree_attention_over_candidate_token_tree__sampling_kernel"
HEADER = open("standalone__tree_speculative_verify_tree_attention_over_candidate_token_tree__sampling.s.ref").read().split("; @launch")[0]

def f32(x): return "0x%08x" % struct.unpack("<I", struct.pack("<f", x))[0]

KP = 1088
KT = 8 * KP
SLOT = KT + 4096
NT = 64

def gen(D=4, NL=1, ldflags="nt", stflags="", T=16.0, stamp=False, name=NAME, prio=0):
    F = D - 1
    U = D if D % 2 == 0 else 2 * D
    RING = D * SLOT
    K0A = RING; KTA = K0A + KT; QA = KTA + KT
    LDS = max(QA + 4 * KT, 82 * 1024)
    nK, nV = 8 // NL, 4 // NL
    nS = nK + nV
    out = []; trace = []
    def A(s, tr=True):
        out.append(s if s.endswith(":") else "    " + s)
    Q = 4; KF = Q + 32; VF = KF + 32; S = [VF + 16, VF + 32]; ST = VF + 48; C = ST + 16; O = C + 16
    P = O + 32; LS = P + 8; SEL = LS + 4; KA = SEL + 4; nhi = (RING - 1) // 65536 + 1 if RING > 65536 - 0 else 1
    per_bank = min(D, 5)
    nbank = (D + per_bank - 1) // per_bank
    VA = KA + 2 * nbank; MX = VA + 2 * nbank; T0 = MX + 1; T0 += T0 & 1; NV = T0 + 12
    def v(b, n=1): return f"v{b}" if n == 1 else f"v[{b}:{b+n-1}]"
    lf = (" " + ldflags) if ldflags else ""
    sf = (" " + stflags) if stflags else ""

    out.append(HEADER.rstrip("\n"))
    out.append(f"; @launch grid=(256,1,1) block=({(4+NL)*64},1,1) lds={LDS}")
    out.append('.amdgcn_target "amdgcn-amd-amdhsa--gfx950"')
    out.append(".text"); out.append(f".globl {name}"); out.append(".p2align 8"); out.append(f".type {name},@function")
    A(f"{name}:")
    A("s_cmp_ge_u32 s2, 256"); A("s_cbranch_scc1 L_end")
    if stamp: A("s_memrealtime s[60:61]")
    A("v_lshrrev_b32 v1, 6, v0")
    A("s_and_b32 s40, s2, 7"); A("s_lshr_b32 s41, s2, 4")
    A("v_readfirstlane_b32 s3, v1")
    A("s_lshl_b32 s40, s40, 4"); A("s_add_u32 s40, s40, s41")
    A("s_bfe_u32 s41, s2, 0x10003")
    A("v_and_b32 v0, 63, v0")
    A("v_lshrrev_b32 v1, 4, v0"); A("v_xor_b32 v2, v0, v1"); A("v_lshlrev_b32 v2, 4, v2")
    A(f"s_cmp_ge_u32 s3, {NL}"); A("s_cbranch_scc1 L_compute")

    A("s_load_dwordx8 s[4:11], s[0:1], 8")
    A(f"s_mul_i32 s28, s3, {8192//NL}")
    A("v_add_u32 v2, s28, v2")
    A("v_lshrrev_b32 v3, 3, v0"); A("v_lshlrev_b32 v3, 8, v3")
    A("v_and_b32 v4, 7, v0"); A("v_and_b32 v1, 1, v1"); A("v_lshlrev_b32 v1, 2, v1"); A("v_xor_b32 v4, v4, v1")
    A("v_lshl_add_u32 v3, v4, 4, v3")
    A("s_lshl_b32 s29, s41, 7"); A("s_add_u32 s29, s29, s28"); A("v_add_u32 v3, s29, v3")
    A(f"s_mul_i32 s30, s3, {nK*KP}")
    A(f"s_mul_i32 s31, s3, {nV*1024}"); A(f"s_add_u32 s31, s31, {KT}")
    A("s_lshl_b32 s32, s40, 19"); A("s_lshl_b32 s33, s40, 12")
    A("s_mov_b32 s14, 0x80000"); A("s_mov_b32 s15, 0x20000"); A("s_mov_b32 s18, 0x80000"); A("s_mov_b32 s19, 0x20000")
    A("s_movk_i32 s22, 0x1000"); A("s_mov_b32 s23, 0x20000"); A("s_movk_i32 s26, 0x1000"); A("s_mov_b32 s27, 0x20000")
    A("s_waitcnt lgkmcnt(0)")
    A("s_add_u32 s12, s4, s32"); A("s_addc_u32 s13, s5, 0")
    A("s_add_u32 s16, s6, s32"); A("s_addc_u32 s17, s7, 0")
    A("s_add_u32 s20, s8, s33"); A("s_addc_u32 s21, s9, 0")
    A("s_add_u32 s24, s10, s33"); A("s_addc_u32 s25, s11, 0")
    def issueK(srd, mem, lds, n=nK):
        for p in range(n):
            if p == 0:
                if lds[0]: A(f"s_add_u32 m0, s30, {lds[0]}")
                else: A(f"s_add_u32 m0, s30, {lds[1]}")
            else: A(f"s_add_u32 m0, m0, {KP}")
            c = mem[1] + p * 1024
            if mem[0]: A(f"s_add_u32 s36, {mem[0]}, {c}")
            else: A(f"s_mov_b32 s36, {c}")
            A(f"buffer_load_dwordx4 v2, {srd}, s36 offen{lf} lds")
    def issueV(srd, mem, lds, n=nV):
        for p in range(n):
            if p == 0:
                if lds[0]: A(f"s_add_u32 m0, s31, {lds[0]}")
                else: A(f"s_add_u32 m0, s31, {lds[1]}")
            else: A(f"s_add_u32 m0, m0, 1024")
            c = mem[1] + p * 2048
            if mem[0]: A(f"s_add_u32 s36, {mem[0]}, {c}")
            else: A(f"s_mov_b32 s36, {c}")
            A(f"buffer_load_dwordx4 v3, {srd}, s36 offen{lf} lds")
    issueK("s[12:15]", (None, 0), (None, K0A))
    issueK("s[20:23]", (None, 0), (None, KTA), min(nK, 4))
    issueK("s[12:15]", (None, 8192), (None, (D - 1) * SLOT))
    issueV("s[24:27]", (None, 0), (None, (D - 1) * SLOT), min(nV, 2))
    A("s_mov_b32 s34, 0"); A("s_mov_b32 s35, 0")
    A("L_ld_pre:")
    issueV("s[16:19]", ("s34", 0), ("s35", 0)); issueK("s[12:15]", ("s34", 16384), ("s35", 0))
    A("s_add_u32 s34, s34, 8192"); A(f"s_add_u32 s35, s35, {SLOT}")
    A(f"s_cmp_lt_u32 s34, {F*8192}"); A("s_cbranch_scc1 L_ld_pre")
    A(f"s_waitcnt vmcnt({F*nS})"); A("s_barrier")
    A("L_ld_loop:")
    A(f"s_waitcnt vmcnt({(F-1)*nS})"); A("s_barrier")
    issueV("s[16:19]", ("s34", 0), ("s35", 0)); issueK("s[12:15]", ("s34", 16384), ("s35", 0))
    A(f"s_add_u32 s35, s35, {SLOT}"); A(f"s_cmp_eq_u32 s35, {RING}"); A("s_cselect_b32 s35, 0, s35")
    A("s_add_u32 s34, s34, 8192"); A(f"s_cmp_lt_u32 s34, {(NT-2)*8192}"); A("s_cbranch_scc1 L_ld_loop")
    pieces = lambda st: nS if st < NT - 2 else (nV if st < NT else 0)
    for s in range(NT - 2 - F, NT):
        A(f"s_waitcnt vmcnt({sum(pieces(x) for x in range(s+1, s+F))})"); A("s_barrier")
        if s + F < NT: issueV("s[16:19]", (None, (s + F) * 8192), (None, ((s + F) % D) * SLOT))
    A("s_endpgm")

    mark0 = len(out)
    A("L_compute:")
    A("s_load_dwordx2 s[4:5], s[0:1], 0"); A("s_load_dwordx4 s[8:11], s[0:1], 40")
    if stamp: A("s_load_dwordx2 s[52:53], s[0:1], 64")
    if prio: A(f"s_setprio {prio}")
    A(f"s_sub_u32 s3, s3, {NL}")
    A("s_lshl_b32 s28, s3, 13"); A("v_add_u32 v2, s28, v2")
    A(f"s_mul_i32 s29, s3, {KT}"); A(f"s_add_u32 s29, s29, {QA}")
    A("s_lshl_b32 s32, s40, 15"); A("s_lshr_b32 s33, s40, 2"); A("s_lshl_b32 s33, s33, 9")
    A("s_mov_b32 s14, 0x8000"); A("s_mov_b32 s15, 0x20000"); A("s_movk_i32 s18, 0x200"); A("s_mov_b32 s19, 0x20000")
    A("s_mov_b32 s22, 0x8000"); A("s_mov_b32 s23, 0x20000")
    t = T0
    A(f"v_and_b32 v{t}, 15, v0"); A(f"v_lshrrev_b32 v{t+1}, 5, v0"); A(f"v_lshlrev_b32 v{t+2}, 3, v{t+1}")
    A(f"v_lshl_add_u32 v3, v{t}, 5, v{t+2}")
    A("s_mov_b32 m0, s29")
    A("s_waitcnt lgkmcnt(0)")
    A("s_add_u32 s12, s4, s32"); A("s_addc_u32 s13, s5, 0")
    for p in range(8):
        if p: A(f"s_add_u32 m0, m0, {KP}")
        A(f"s_movk_i32 s36, {p*1024}")
        A(f"buffer_load_dwordx4 v2, s[12:15], s36 offen{lf} lds")
    A("s_add_u32 s16, s8, s33"); A("s_addc_u32 s17, s9, 0")
    A("s_add_u32 s20, s10, s32"); A("s_addc_u32 s21, s11, 0")
    A(f"buffer_load_dwordx2 {v(P,2)}, v3, s[16:19], 0 offen")
    A(f"buffer_load_dwordx2 {v(P+2,2)}, v3, s[16:19], 0 offen offset:16")
    A(f"v_bfe_u32 v{t+2}, v0, 2, 3"); A(f"v_mul_u32_u24 v{t+2}, {KP}, v{t+2}")
    A(f"v_and_b32 v{t+3}, 3, v0"); A(f"v_lshl_add_u32 v{t+2}, v{t+3}, 8, v{t+2}")
    A(f"v_xor_b32 v{t+4}, v{t+1}, v{t+3}"); A(f"v_lshl_add_u32 v{KA}, v{t+4}, 4, v{t+2}")
    A(f"v_xor_b32 v{t+4}, 2, v{t+4}"); A(f"v_lshl_add_u32 v{KA+1}, v{t+4}, 4, v{t+2}")
    A(f"v_bfe_u32 v{t+2}, v0, 2, 2"); A(f"v_lshl_add_u32 v{t+4}, v{t+1}, 2, v{t+2}"); A(f"v_lshlrev_b32 v{t+4}, 7, v{t+4}")
    A(f"v_lshrrev_b32 v{t+2}, 1, v{t+2}"); A(f"v_lshl_add_u32 v{t+4}, v{t+2}, 6, v{t+4}")
    A(f"v_bfe_u32 v{t+2}, v0, 4, 1"); A(f"v_lshl_add_u32 v{t+4}, v{t+2}, 5, v{t+4}")
    A(f"v_lshl_add_u32 v{t+4}, v{t+3}, 3, v{t+4}")
    A(f"v_add_u32 v{VA}, {KT}, v{t+4}"); A(f"v_xor_b32 v{t+4}, 64, v{t+4}"); A(f"v_add_u32 v{VA+1}, {KT}, v{t+4}")
    for b in range(1, nbank):
        for r in (KA, KA + 1, VA, VA + 1): A(f"v_add_u32 v{r+2*b}, {b*per_bank*SLOT}, v{r}")
    A(f"v_add_u32 v{t+6}, s29, v{KA}"); A(f"v_add_u32 v{t+7}, s29, v{KA+1}")
    A(f"v_add_u32 v{t+8}, {K0A}, v{KA}"); A(f"v_add_u32 v{t+9}, {K0A}, v{KA+1}")
    A(f"v_lshrrev_b32 v{t+4}, 2, v0"); A(f"v_and_b32 v{t+4}, 4, v{t+4}"); A(f"v_xor_b32 v{t+4}, v0, v{t+4}")
    A(f"v_and_b32 v{t+4}, 7, v{t+4}"); A(f"v_cmp_eq_u32 vcc, 0, v{t+4}"); A(f"v_mov_b32 v{t+5}, 0x3f803f80")
    cs = math.log2(math.e) / math.sqrt(128.0)
    A(f"s_mov_b32 s44, {f32(cs)}"); A(f"s_mov_b32 s45, {f32(cs)}")
    A(f"s_mov_b32 s46, {f32(1e9*math.log2(math.e))}"); A(f"s_mov_b32 s47, {f32(T)}"); A("s_mov_b32 s48, 0xffff0000")
    for i in range(4): A(f"v_cndmask_b32 v{SEL+i}, 0, v{t+5}, vcc")
    def kread(dst, i, base, off): A(f"ds_read_b128 {v(dst+4*i,4)}, v{base+(i&1)} offset:{off+64*(i>>1)}")
    def slot_addr(slot): return 2 * (slot // per_bank), (slot % per_bank) * SLOT
    def kread_slot(i, slot):
        b, o = slot_addr(slot); kread(KF, i, KA + b, o)
    def vread_slot(j, slot):
        tt, db, u = j >> 2, (j >> 1) & 1, j & 1
        b, o = slot_addr(slot)
        A(f"ds_read_b64_tr_b16 {v(VF+2*j,2)}, v{VA+b+db} offset:{o+(2*tt+u)*1024}")
    A("s_waitcnt vmcnt(2)")
    for i in range(8): kread(Q, i, t + 6, 0)
    A("s_waitcnt vmcnt(0)")
    for g in range(4):
        A(f"v_lshlrev_b32 v{ST+2*g}, 16, v{P+g}"); A(f"v_and_b32 v{ST+2*g+1}, s48, v{P+g}")
    for k in range(8): A(f"v_fma_f32 v{ST+k}, v{ST+k}, s46, -s46")
    def prescale(i):
        for r in range(4):
            x = Q + 4 * i + r; tt = t + 2 * (r & 1)
            A(f"v_lshlrev_b32 v{tt}, 16, v{x}"); A(f"v_and_b32 v{tt+1}, s48, v{x}")
            A(f"v_pk_mul_f32 {v(tt,2)}, {v(tt,2)}, s[44:45]"); A(f"v_cvt_pk_bf16_f32 v{x}, v{tt}, v{tt+1}")
    A("s_waitcnt lgkmcnt(0)")
    prescale(0); prescale(1)
    A("s_barrier")
    for i in range(4): kread(O, i, t + 8, KT); kread(KF, i, t + 8, 0)
    prescale(2); prescale(3)
    A("s_waitcnt lgkmcnt(0)")
    for i in range(4, 8): kread(O, i, t + 8, KT); kread(KF, i, t + 8, 0)
    def qk(dst, a, i, c): A(f"v_mfma_f32_32x32x16_bf16 {v(dst,16)}, {v(a+4*i,4)}, {v(Q+4*i,4)}, {c}")
    for i in range(8):
        if i == 4: A("s_waitcnt lgkmcnt(0)")
        qk(ST, O, i, v(ST, 16)); qk(S[0], KF, i, v(S[0], 16) if i else "0")
        if i < 4: prescale(i + 4)
    for j in range(4): vread_slot(j, D - 1)
    for i in range(7): kread_slot(i, D - 1)
    A("s_nop 0")
    A(f"v_max3_f32 v{MX}, v{ST}, v{ST+1}, v{ST+2}")
    A(f"v_max3_f32 v{MX}, v{MX}, v{ST+3}, v{ST+4}")
    A(f"v_max3_f32 v{MX}, v{MX}, v{ST+5}, v{ST+6}")
    A(f"v_max3_f32 v{t}, v{S[0]}, v{S[0]+1}, v{ST+7}")
    for k in range(2, 16, 2): A(f"v_max3_f32 v{t if k&2 else MX}, v{t if k&2 else MX}, v{S[0]+k}, v{S[0]+k+1}")
    A(f"v_max_f32 v{MX}, v{MX}, v{t}"); A(f"v_mov_b32 v{t}, v{MX}"); A("s_nop 1")
    A(f"v_permlane32_swap_b32 v{MX}, v{t}"); A(f"v_max_f32 v{MX}, v{MX}, v{t}")
    for k in range(8): A(f"v_sub_f32 v{ST+k}, v{ST+k}, v{MX}")
    for k in range(8): A(f"v_exp_f32 v{ST+k}, v{ST+k}")
    for k in range(16): A(f"v_sub_f32 v{C+k}, 0, v{MX}")
    for k in range(4): A(f"v_cvt_pk_bf16_f32 v{P+k}, v{ST+2*k}, v{ST+2*k+1}")
    def pv(tt, db, c=None): A(f"v_mfma_f32_32x32x16_bf16 {v(O+16*db,16)}, {v(VF+8*tt+4*db,4)}, {v(P+4*tt,4)}, {c or v(O+16*db,16)}")
    def rs(tt, c=None): A(f"v_mfma_f32_16x16x32_bf16 {v(LS,4)}, {v(SEL,4)}, {v(P+4*tt,4)}, {c or v(LS,4)}")
    A(f"v_sub_f32 v{S[0]}, v{S[0]}, v{MX}"); A("s_waitcnt lgkmcnt(7)")
    pv(0, 0, "0")
    for k in range(1, 7): A(f"v_sub_f32 v{S[0]+k}, v{S[0]+k}, v{MX}")
    pv(0, 1, "0")
    for k in range(7, 13): A(f"v_sub_f32 v{S[0]+k}, v{S[0]+k}, v{MX}")
    rs(0, "0")
    for k in range(13, 16): A(f"v_sub_f32 v{S[0]+k}, v{S[0]+k}, v{MX}")
    A("s_mov_b32 s30, 0"); A("s_waitcnt lgkmcnt(3)")
    last = (NT - 2) % U
    order = [(last + 1 + k) % U for k in range(U)]
    pre_trips = 1 if order[0] != 0 else 0
    if order[0] != 0: A("s_branch L_body0")
    mark1 = len(out)
    bodies = {}
    def body(u):
        m0 = len(out)
        cur, nxt = S[u & 1], S[(u + 1) & 1]
        slot, prev = u % D, (u - 1) % D
        ex = lambda k: A(f"v_exp_f32 v{cur+k}, v{cur+k}")
        cv = lambda k: A(f"v_cvt_pk_bf16_f32 v{P+k}, v{cur+2*k}, v{cur+2*k+1}")
        q = lambda i: qk(nxt, KF, i, v(nxt, 16) if i else v(C, 16))
        mx = lambda k: A(f"v_max3_f32 v{MX}, v{nxt+15 if k==0 else MX}, v{nxt+2*k}, v{nxt+2*k+1}") if k < 7 else A(f"v_max_f32 v{MX}, v{MX}, v{nxt+14}")
        A(f"L_body{u}:")
        q(0); ex(0); ex(1); kread_slot(7, prev)
        q(1); ex(2); ex(3); cv(0)
        q(2); ex(4); ex(5); cv(1)
        q(3); ex(6); ex(7); cv(2); A("s_waitcnt lgkmcnt(0)"); A("s_barrier")
        q(4); [vread_slot(j, slot) for j in range(4)]; ex(8)
        q(5); [vread_slot(j, slot) for j in range(4, 8)]; ex(9)
        q(6); cv(3); ex(10); ex(11); cv(4)
        q(7); ex(12); ex(13); cv(5); A("s_waitcnt lgkmcnt(4)")
        pv(0, 0); ex(14); ex(15); cv(6); kread_slot(0, slot)
        pv(0, 1); cv(7); kread_slot(1, slot); kread_slot(2, slot); kread_slot(3, slot); mx(0); mx(1)
        rs(0); kread_slot(4, slot); A("s_waitcnt lgkmcnt(5)")
        pv(1, 0); mx(2); mx(3); mx(4); mx(5); kread_slot(5, slot)
        pv(1, 1); mx(6); mx(7); A(f"v_cmp_lt_f32 vcc, s47, v{MX}"); kread_slot(6, slot)
        if u == last: A("s_add_u32 s30, s30, 1"); A(f"s_cmp_lt_u32 s30, {(NT-1+U-1)//U}")
        rs(1); A("s_waitcnt lgkmcnt(3)")
        A(f"s_cbranch_vccnz L_rare{u}")
        A(f"L_back{u}:")
        bodies[u] = out[m0:]
    A("L_loop:")
    for u in order: body(u)
    A("s_cbranch_scc1 L_loop")
    mark2 = len(out)
    cur = S[(NT - 1) & 1]; slot = (NT - 1) % D
    A("s_barrier")
    for j in range(8): vread_slot(j, slot)
    for k in range(8): A(f"v_exp_f32 v{cur+k}, v{cur+k}")
    for k in range(4): A(f"v_cvt_pk_bf16_f32 v{P+k}, v{cur+2*k}, v{cur+2*k+1}")
    A(f"v_exp_f32 v{cur+8}, v{cur+8}"); A("s_waitcnt lgkmcnt(0)")
    pv(0, 0)
    for k in range(9, 12): A(f"v_exp_f32 v{cur+k}, v{cur+k}")
    pv(0, 1)
    for k in range(12, 16): A(f"v_exp_f32 v{cur+k}, v{cur+k}")
    rs(0)
    for k in range(4, 8): A(f"v_cvt_pk_bf16_f32 v{P+k}, v{cur+2*k}, v{cur+2*k+1}")
    A(f"v_and_b32 v{t}, 31, v0"); A(f"v_mul_u32_u24 v{t}, 144, v{t}")
    rs(1); pv(1, 0)
    A(f"v_lshrrev_b32 v{t+1}, 5, v0"); A(f"v_lshl_add_u32 v{t}, v{t+1}, 3, v{t}"); A(f"v_add_u32 v{t}, s29, v{t}")
    A(f"v_lshrrev_b32 v{t+3}, 3, v0"); A(f"v_and_b32 v{t+4}, 7, v0")
    pv(1, 1)
    A(f"v_lshlrev_b32 v{t+4}, 4, v{t+4}")
    A(f"v_mul_u32_u24 v{t+1}, 144, v{t+3}"); A(f"v_add3_u32 v{t+1}, v{t+1}, v{t+4}, s29")
    A(f"v_lshl_add_u32 v{t+2}, v{t+3}, 8, v{t+4}")
    A("s_lshl_b32 s31, s41, 7"); A("s_add_u32 s31, s31, s28")
    A(f"v_rcp_f32 v{MX}, v{LS}")
    A("s_add_u32 s34, s31, 4096")
    for db in range(2):
        for g in range(4):
            o = O + 16 * db + 4 * g; d = S[0] + 8 * db + 2 * g
            for r in range(4): A(f"v_mul_f32 v{o+r}, v{o+r}, v{MX}")
            A(f"v_cvt_pk_bf16_f32 v{d}, v{o}, v{o+1}"); A(f"v_cvt_pk_bf16_f32 v{d+1}, v{o+2}, v{o+3}")
            A(f"ds_write_b64 v{t}, {v(d,2)} offset:{db*64+g*16}")
    A("s_waitcnt lgkmcnt(0)")
    for j in range(4): A(f"ds_read_b128 {v(KF+4*j,4)}, v{t+1} offset:{j*8*144}")
    for j in range(4):
        A(f"s_waitcnt lgkmcnt({3-j})")
        A(f"buffer_store_dwordx4 {v(KF+4*j,4)}, v{t+2}, s[20:23], {'s31' if j<2 else 's34'} offen offset:{(j&1)*2048}{sf}")
    if stamp:
        A("s_memrealtime s[62:63]"); A("s_waitcnt vmcnt(0)"); A("s_memrealtime s[64:65]"); A("s_getreg_b32 s66, hwreg(HW_REG_XCC_ID)")
        A("s_waitcnt lgkmcnt(0)")
        A("v_mov_b32 v4, s60"); A("v_mov_b32 v5, s62"); A("v_mov_b32 v6, s64"); A("v_mov_b32 v7, s66")
        A("s_lshl_b32 s39, s2, 2"); A("s_add_u32 s39, s39, s3"); A("s_lshl_b32 s39, s39, 4"); A("v_mov_b32 v3, s39")
        A("s_mov_b32 s54, 0x100000"); A("s_mov_b32 s55, 0x20000")
        A("v_cmp_eq_u32 vcc, 0, v0"); A("s_and_saveexec_b64 s[56:57], vcc")
        A("buffer_store_dwordx4 v[4:7], v3, s[52:55], 0 offen")
    A("L_end:"); A("s_endpgm")
    mark3 = len(out)
    rare = {}
    for u in range(U):
        m0 = len(out)
        nxt = S[(u + 1) & 1]
        A(f"L_rare{u}:")
        A(f"v_mov_b32 v{t}, v{MX}"); A("s_nop 15")
        A(f"v_permlane32_swap_b32 v{MX}, v{t}"); A(f"v_max3_f32 v{MX}, v{MX}, v{t}, 0")
        A(f"v_exp_f32 v{t}, -v{MX}")
        for k in range(16): A(f"v_sub_f32 v{nxt+k}, v{nxt+k}, v{MX}")
        for k in range(16): A(f"v_sub_f32 v{C+k}, v{C+k}, v{MX}")
        for k in range(32): A(f"v_mul_f32 v{O+k}, v{O+k}, v{t}")
        A(f"v_mul_f32 v{LS}, v{LS}, v{t}"); A("s_nop 1")
        A(f"s_branch L_back{u}")
        rare[u] = out[m0:]
    out.append('.section .rodata,"a"'); out.append(".p2align 6"); out.append(f".amdhsa_kernel {name}")
    nv = (NV + 3) // 4 * 4
    out += [f"  .amdhsa_next_free_vgpr {nv}", f"  .amdhsa_next_free_sgpr {72 if stamp else 56}", f"  .amdhsa_accum_offset {nv}",
            "  .amdhsa_group_segment_fixed_size 0", "  .amdhsa_kernarg_size 72", "  .amdhsa_user_sgpr_count 2",
            "  .amdhsa_user_sgpr_kernarg_segment_ptr 1", "  .amdhsa_system_sgpr_workgroup_id_x 1", ".end_amdhsa_kernel"]
    bad = 0
    head = [l for l in out[:mark0] if not l.startswith(";")]
    bad += hazard.check(head, "loader")
    seq = out[mark0:mark1]
    for s in range(0, U + last + 1): seq = seq + bodies[s % U]
    bad += hazard.check(head[:20] + seq + out[mark2:mark3], "main")
    for u in range(U):
        bad += hazard.check(bodies[u] + rare[u] + bodies[(u + 1) % U], f"rare{u}")
    bad += hazard.check(bodies[last] + rare[last] + out[mark2:mark3], "rare-last")
    assert bad == 0
    return "\n".join(out) + "\n", 256, (4 + NL) * 64, LDS

if __name__ == "__main__":
    src, *_ = gen()
    p = "standalone__tree_speculative_verify_tree_attention_over_candidate_token_tree__sampling.s"
    open(p, "w").write(src)
    print("written", len(src))
```
